```python
import torch

def _softmax(x, axis=-1):
    return torch.softmax(x, dim=axis)

def _gelu(x):
    return torch.nn.functional.gelu(x, approximate='tanh')

def _silu(x):
    return torch.nn.functional.silu(x)

def _sigmoid(x):
    return torch.sigmoid(x)

def _layernorm(x, axis=-1, eps=1e-05):
    m = x.mean(dim=axis, keepdim=True)
    v = x.var(dim=axis, keepdim=True, unbiased=False)
    return (x - m) / torch.sqrt(v + eps)

def _scatter_add(tgt, idx, src, axis=0):
    return tgt.clone().index_add_(axis, idx, src)

def _segment_sum(src, seg, n):
    out = torch.zeros((n,) + src.shape[1:], dtype=src.dtype)
    return out.index_add_(0, seg, src)

def _pad(x, pw):
    flat = tuple((v for pair in reversed(pw) for v in pair))
    return torch.nn.functional.pad(x, flat)
kernel_name = 'adaLN_cond__gqa_block_cached__geglu_ffn__decode'

def setup_inputs():

    _w = lambda a: (lambda t: t.to(torch.bfloat16) if t.is_floating_point() else t)(torch.as_tensor(a))

    def _A_setup():
        B, Sq, D = (1, 1, 1024)
        Hq, Hkv, Sk, Dh = (32, 4, 65536, 128)
        assert Hq % Hkv == 0, (Hq, Hkv)
        return {'x': _w((lambda *s: torch.randn(*s, dtype=torch.bfloat16) * 0.05)(B, Sq, D)), 'k_cache': _w((lambda *s: torch.randn(*s, dtype=torch.bfloat16) * 3.2)(B, Hkv, Sk, Dh)), 'v_cache': _w((lambda *s: torch.randn(*s, dtype=torch.bfloat16) * 0.4)(B, Hkv, Sk, Dh)), 'wq': _w((lambda *s: torch.randn(*s, dtype=torch.bfloat16) * 3.2)(D, Hq * Dh) * D ** (-0.5)), 'wo': _w((lambda *s: torch.randn(*s, dtype=torch.bfloat16) * 0.4)(Hq * Dh, D) * (Hq * Dh) ** (-0.5))}
    _A_in = _A_setup()

    def _B_setup():
        B, S, D, F = (1, 1, 1024, 3584)
        return {'x': _w((lambda *s: torch.randn(*s, dtype=torch.bfloat16) * 0.05)(B, S, D)), 'w_gate': _w((lambda *s: torch.randn(*s, dtype=torch.bfloat16) * 0.05)(D, F)), 'w_up': _w((lambda *s: torch.randn(*s, dtype=torch.bfloat16) * 0.05)(D, F)), 'w_down': _w((lambda *s: torch.randn(*s, dtype=torch.bfloat16) * 0.05)(F, D))}
    _B_in = _B_setup()
    return {'A_x': _A_in['x'], 'A_k_cache': _A_in['k_cache'], 'A_v_cache': _A_in['v_cache'], 'A_wq': _A_in['wq'], 'A_wo': _A_in['wo'], 'B_x': _B_in['x'], 'B_w_gate': _B_in['w_gate'], 'B_w_up': _B_in['w_up'], 'B_w_down': _B_in['w_down'], 'c': _w((lambda *s: torch.randn(*s, dtype=torch.bfloat16) * 0.4)(1, 1024) * 8.0), 'w_mod': _w((lambda *s: torch.randn(*s, dtype=torch.bfloat16) * 0.4)(1024, 6 * 1024) * 1024 ** (-0.5) * 8.0)}

def reference(A_x, A_k_cache, A_v_cache, A_wq, A_wo, B_x, B_w_gate, B_w_up, B_w_down, c, w_mod):

    def _A_ref(x, k_cache, v_cache, wq, wo):
        B, Sq, D = x.shape
        Hq, Dh = (32, 128)
        Hkv = k_cache.shape[1]
        rep = Hq // Hkv
        q = (lambda x, *d: x.permute(*d))((x @ wq).reshape(B, Sq, Hq, Dh), 0, 2, 1, 3)
        k = (lambda x, n, axis: torch.repeat_interleave(x, n, dim=axis))(k_cache, rep, axis=1)
        v = (lambda x, n, axis: torch.repeat_interleave(x, n, dim=axis))(v_cache, rep, axis=1)
        scores = torch.einsum('bhqd,bhkd->bhqk', q, k) * Dh ** (-0.5)
        p = _softmax(scores, axis=-1)
        o = torch.einsum('bhqk,bhkd->bhqd', p, v)
        return (lambda x, *d: x.permute(*d))(o, 0, 2, 1, 3).reshape(B, Sq, Hq * Dh) @ wo

    def _B_ref(x, w_gate, w_up, w_down):
        return _gelu(x @ w_gate) * (x @ w_up) @ w_down
    x = A_x
    mod = (_silu(c) @ w_mod).reshape(c.shape[0], 6, 1, -1)
    sa, ca, ga, sb, cb, gb = (mod[:, 0].clone(), mod[:, 1].clone(), mod[:, 2].clone(), mod[:, 3].clone(), mod[:, 4].clone(), mod[:, 5].clone())
    h = _layernorm(x, axis=-1) * (1 + ca) + sa
    x = x + ga * _A_ref(h, A_k_cache, A_v_cache, A_wq, A_wo)
    h = _layernorm(x, axis=-1) * (1 + cb) + sb
    x = x + gb * _B_ref(h, B_w_gate, B_w_up, B_w_down)
    return x
```

```python
import sys
OUT = []
def E(s=""):
    for l in s.split("\n"):
        OUT.append(l)

WS_MOD   = 0x0
WS_QACC  = 0x8000
WS_ATT   = 0xC000
WS_ZEND  = 0xE000
WS_AB    = 0x10000
WS_YP    = 0x30000
WS_PM    = 0x40000
WS_PL    = 0x42000
WS_PO    = 0x100000
WS_SIZE  = 268435456

KA = dict(x=0, K=8, V=16, wq=24, wo=32, wg=48, wu=56, wd=64, c=72, wmod=80, out=88, dbg=96, ws=104)

def srd(dst, base, nbytes):
    E(f"    s_mov_b32 s{dst}, s{base}")
    E(f"    s_mov_b32 s{dst+1}, s{base+1}")
    E(f"    s_mov_b32 s{dst+2}, {nbytes}")
    E(f"    s_mov_b32 s{dst+3}, 0x00020000")

def rnd(v, t):
    E(f"    v_cvt_pk_bf16_f32 v{t}, v{v}, v{v}")
    E(f"    v_lshlrev_b32 v{v}, 16, v{t}")

def unpack(dlo, dhi, src):
    E(f"    v_lshlrev_b32 v{dlo}, 16, v{src}")
    E(f"    v_and_b32 v{dhi}, 0xffff0000, v{src}")

def wave_reduce(op, v, t):
    for off in (0x041F, 0x081F, 0x101F, 0x201F, 0x401F):
        E(f"    ds_swizzle_b32 v{t}, v{v} offset:0x{off:x}")
        E(f"    s_waitcnt lgkmcnt(0)")
        E(f"    {op} v{v}, v{v}, v{t}")
    E(f"    v_mov_b32 v{t}, v{v}")
    E(f"    s_nop 1")
    E(f"    v_permlane32_swap_b32 v{t}, v{v}")
    E(f"    s_nop 1")
    E(f"    {op} v{v}, v{v}, v{t}")

def block_reduce(op, v, t, ldsoff, nwaves, vtid, name):
    wave_reduce(op, v, t)
    E(f"    v_lshrrev_b32 v{t}, 6, v{vtid}")
    E(f"    v_lshlrev_b32 v{t}, 2, v{t}")
    E(f"    ds_write_b32 v{t}, v{v} offset:{ldsoff}")
    E(f"    s_waitcnt lgkmcnt(0)")
    E(f"    s_barrier")
    E(f"    v_mov_b32 v{t}, 0")
    E(f"    ds_read_b128 v[{t+2}:{t+5}], v{t} offset:{ldsoff}")
    E(f"    ds_read_b128 v[{t+6}:{t+9}], v{t} offset:{ldsoff+16}")
    E(f"    s_waitcnt lgkmcnt(0)")
    E(f"    {op} v{v}, v{t+2}, v{t+3}")
    for k in range(4, 10):
        E(f"    {op} v{v}, v{v}, v{t+k}")
    E(f"    s_barrier")

KERNELS = []
def kernel_begin(name, nwg):
    E(f".p2align 8")
    E(f".globl {name}")
    E(f".type {name},@function")
    E(f"{name}:")
    E(f"    s_cmp_ge_u32 s2, {nwg}")
    E(f"    s_cbranch_scc1 {name}_end")
def kernel_end(name, vgpr, lds):
    E(f"{name}_end:")
    E(f"    s_endpgm")
    KERNELS.append((name, vgpr, lds))

def gemv(mats, CC, R, stride, s_colbyte, s_rowbase, xoff, redoff, res, nthreads=512):
    lc = CC.bit_length() - 1
    RG = nthreads // CC
    NC = CC * 8
    nm = len(mats)
    E(f"    v_and_b32 v2, {CC-1}, v0")
    E(f"    v_lshrrev_b32 v3, {lc}, v0")
    E(f"    v_add_u32 v4, s{s_rowbase}, v3")
    E(f"    s_mov_b32 s90, {stride}")
    E(f"    v_mul_lo_u32 v5, v4, s90")
    E(f"    v_lshlrev_b32 v6, 4, v2")
    E(f"    v_add3_u32 v5, v5, v6, s{s_colbyte}")
    for i in range(R):
        E(f"    s_mov_b32 s{91}, {RG*stride*i}")
        for m, w in enumerate(mats):
            b = 64 + (m*R + i)*4
            E(f"    buffer_load_dwordx4 v[{b}:{b+3}], v5, s[{w}:{w+3}], s91 offen")
    return (lc, RG, NC)

def gemv_finish(mats, CC, R, xoff, redoff, res, nthreads=512):
    lc = CC.bit_length() - 1
    RG = nthreads // CC
    NC = CC * 8
    nm = len(mats)
    E(f"    v_lshlrev_b32 v7, 2, v4")
    for i in range(R):
        E(f"    ds_read_b32 v{16+i}, v7 offset:{xoff + RG*4*i}")
    for m in range(nm):
        for j in range(8):
            E(f"    v_mov_b32 v{32+m*8+j}, 0")
    E(f"    s_waitcnt vmcnt(0) lgkmcnt(0)")
    for m in range(nm):
        for i in range(R):
            b = 64 + (m*R + i)*4
            for d in range(4):
                unpack(8, 9, b+d)
                E(f"    v_fmac_f32 v{32+m*8+2*d}, v{16+i}, v8")
                E(f"    v_fmac_f32 v{32+m*8+2*d+1}, v{16+i}, v9")
    msz = RG*NC*4
    E(f"    v_lshlrev_b32 v7, 5, v0")
    for m in range(nm):
        E(f"    ds_write_b128 v7, v[{32+m*8}:{35+m*8}] offset:{redoff+m*msz}")
        E(f"    ds_write_b128 v7, v[{36+m*8}:{39+m*8}] offset:{redoff+m*msz+16}")
    E(f"    s_waitcnt lgkmcnt(0)")
    E(f"    s_barrier")
    lnc = NC.bit_length() - 1
    P = nthreads // NC
    per = RG // P
    E(f"    v_and_b32 v10, {NC-1}, v0")
    E(f"    v_lshrrev_b32 v11, {lnc}, v0")
    E(f"    v_mul_u32_u24 v12, {per*NC*4}, v11")
    E(f"    v_lshl_add_u32 v12, v10, 2, v12")
    for m in range(nm):
        for k in range(per):
            E(f"    ds_read_b32 v{16+k}, v12 offset:{redoff+m*msz+k*NC*4}")
        E(f"    s_waitcnt lgkmcnt(0)")
        for k in range(1, per):
            E(f"    v_add_f32 v16, v16, v{16+k}")
        E(f"    v_mov_b32 v{48+m}, v16")
    E(f"    s_barrier")
    E(f"    v_lshlrev_b32 v12, 2, v0")
    for m in range(nm):
        E(f"    ds_write_b32 v12, v{48+m} offset:{redoff+m*msz}")
    E(f"    s_waitcnt lgkmcnt(0)")
    E(f"    s_barrier")
    E(f"    v_lshlrev_b32 v12, 2, v10")
    for m in range(nm):
        for k in range(P):
            E(f"    ds_read_b32 v{16+k}, v12 offset:{redoff+m*msz+k*NC*4}")
        E(f"    s_waitcnt lgkmcnt(0)")
        for k in range(1, P):
            E(f"    v_add_f32 v16, v16, v{16+k}")
        E(f"    v_mov_b32 v{res+m}, v16")

def layernorm_mod(vx0, vx1, s_mod, shoff, choff, xoff, lnoff):
    E(f"    v_lshlrev_b32 v20, 3, v0")
    E(f"    s_mov_b32 s92, {shoff}")
    E(f"    s_mov_b32 s93, {choff}")
    E(f"    buffer_load_dwordx2 v[22:23], v20, s[{s_mod}:{s_mod+3}], s92 offen")
    E(f"    buffer_load_dwordx2 v[24:25], v20, s[{s_mod}:{s_mod+3}], s93 offen")
    E(f"    v_add_f32 v26, v{vx0}, v{vx1}")
    block_reduce("v_add_f32", 26, 30, lnoff, 8, 0, "m")
    E(f"    v_mul_f32 v26, 0x3a800000, v26          ; mean f32")
    E(f"    v_sub_f32 v27, v{vx0}, v26")
    E(f"    v_sub_f32 v28, v{vx1}, v26")
    E(f"    v_mul_f32 v27, v27, v27")
    E(f"    v_fmac_f32 v27, v28, v28")
    block_reduce("v_add_f32", 27, 30, lnoff, 8, 0, "v")
    E(f"    v_mul_f32 v27, 0x3a800000, v27          ; var")
    rnd(27, 30); rnd(26, 30)
    E(f"    v_add_f32 v27, 0x3727c5ac, v27          ; +1e-5")
    rnd(27, 30)
    E(f"    v_sqrt_f32 v27, v27")
    E(f"    s_nop 0")
    rnd(27, 30)
    E(f"    v_rcp_f32 v27, v27")
    E(f"    s_waitcnt vmcnt(0)")
    for k, vx in enumerate((vx0, vx1)):
        E(f"    v_sub_f32 v28, v{vx}, v26")
        rnd(28, 30)
        E(f"    v_mul_f32 v28, v28, v27")
        rnd(28, 30)
        E(f"    v_add_f32 v29, 1.0, v{24+k}")
        rnd(29, 30)
        E(f"    v_mul_f32 v28, v28, v29")
        rnd(28, 30)
        E(f"    v_add_f32 v{40+k}, v28, v{22+k}")
        rnd(40+k, 30)
    E(f"    v_lshlrev_b32 v20, 3, v0")
    E(f"    ds_write_b64 v20, v[40:41] offset:{xoff}")

def load_ptrs(names):
    for n, s in names:
        E(f"    s_load_dwordx2 s[{s}:{s+1}], s[0:1], {KA[n]}")
    E(f"    s_waitcnt lgkmcnt(0)")

def k1():
    n = "k1_mod_kernel"
    kernel_begin(n, 192)
    load_ptrs([("c", 4), ("wmod", 6), ("ws", 8)])
    srd(12, 4, 2048); srd(16, 6, 1024*6144*2); srd(20, 8, WS_SIZE)
    E("    v_lshlrev_b32 v1, 2, v0")
    E("    buffer_load_dword v10, v1, s[12:15], 0 offen")
    E("    s_lshl_b32 s24, s2, 6")
    E("    s_mov_b32 s25, 0")
    gemv([16], 4, 8, 12288, 24, 25, 0, 4096, 50)
    E("    s_cmp_ge_u32 s2, 3")
    E(f"    s_cbranch_scc1 {n}_nz")
    E("    v_mov_b32 v12, 0\n    v_mov_b32 v13, 0\n    v_mov_b32 v14, 0\n    v_mov_b32 v15, 0")
    E("    s_lshl_b32 s26, s2, 13")
    E(f"    s_add_u32 s26, s26, {WS_QACC}")
    E("    v_lshlrev_b32 v11, 4, v0")
    E("    buffer_store_dwordx4 v[12:15], v11, s[20:23], s26 offen")
    E(f"{n}_nz:")
    E("    s_waitcnt vmcnt(8)")
    unpack(12, 13, 10)
    for v in (12, 13):
        E(f"    v_mul_f32 v14, 0xbfb8aa3b, v{v}         ; -log2e*x")
        E(f"    v_exp_f32 v14, v14")
        E(f"    s_nop 0")
        E(f"    v_add_f32 v14, 1.0, v14")
        E(f"    v_rcp_f32 v14, v14")
        E(f"    s_nop 0")
        E(f"    v_mul_f32 v{v}, v{v}, v14")
        rnd(v, 14)
    E("    v_lshlrev_b32 v14, 3, v0")
    E("    ds_write_b64 v14, v[12:13]")
    E("    s_waitcnt lgkmcnt(0)")
    E("    s_barrier")
    gemv_finish([16], 4, 8, 0, 4096, 50)
    rnd(50, 51)
    E("    v_cmp_gt_u32 vcc, 32, v0")
    E("    s_and_saveexec_b64 s[30:31], vcc")
    E("    v_lshlrev_b32 v11, 2, v0")
    E("    s_lshl_b32 s26, s2, 7")
    E(f"    buffer_store_dword v50, v11, s[20:23], s26 offen offset:{WS_MOD}")
    kernel_end(n, 128, 4096 + 16384)

def k2():
    n = "k2_q_kernel"
    kernel_begin(n, 256)
    load_ptrs([("x", 4), ("wq", 6), ("ws", 8)])
    srd(12, 4, 2048); srd(16, 6, 1024*4096*2); srd(20, 8, WS_SIZE)
    E("    v_lshlrev_b32 v1, 2, v0")
    E("    buffer_load_dword v10, v1, s[12:15], 0 offen")
    E("    s_and_b32 s26, s2, 63")
    E("    s_lshl_b32 s24, s26, 7")
    E("    s_lshr_b32 s25, s2, 6")
    E("    s_lshl_b32 s25, s25, 8")
    gemv([16], 8, 4, 8192, 24, 25, 0, 8192, 50)
    E("    s_waitcnt vmcnt(4)")
    unpack(12, 13, 10)
    layernorm_mod(12, 13, 20, WS_MOD, WS_MOD + 4096, 0, 4096)
    E("    s_waitcnt lgkmcnt(0)")
    E("    s_barrier")
    gemv_finish([16], 8, 4, 0, 8192, 50)
    E("    v_cmp_gt_u32 vcc, 64, v0")
    E("    s_and_saveexec_b64 s[30:31], vcc")
    E("    v_lshlrev_b32 v11, 2, v0")
    E("    s_lshl_b32 s27, s26, 8")
    E(f"    s_add_u32 s27, s27, {WS_QACC}")
    E("    v_add_u32 v11, s27, v11")
    E("    global_atomic_add_f32 v11, v50, s[8:9]")
    kernel_end(n, 128, 8192 + 16384)

def k3():
    n = "k3_attn_kernel"
    kernel_begin(n, 256)
    load_ptrs([("K", 4), ("V", 6), ("ws", 8)])
    srd(12, 4, 67108864); srd(16, 6, 67108864); srd(20, 8, WS_SIZE)
    E("""    s_lshr_b32 s24, s2, 6
    s_and_b32 s25, s2, 63                   ; split
    v_lshrrev_b32 v1, 6, v0                 ; wave
    v_and_b32 v2, 63, v0                    ; lane
    v_and_b32 v3, 15, v2                    ; r / n
    v_lshrrev_b32 v4, 4, v2                 ; g
    s_lshl_b32 s26, s24, 24
    s_lshl_b32 s27, s25, 18                 ; split*1024*256
    s_add_u32 s26, s26, s27
    v_lshlrev_b32 v5, 15, v1                ; wave*128*256
    v_add_u32 v5, s26, v5
    v_lshl_add_u32 v6, v3, 8, v5
    v_lshl_add_u32 v6, v4, 4, v6
    v_lshl_add_u32 v7, v4, 10, v5
    v_lshl_add_u32 v7, v3, 4, v7""")
    E("""    v_and_b32 v8, 7, v3
    s_lshl_b32 s28, s24, 12                 ; kvh*8*128*4
    v_lshlrev_b32 v8, 9, v8                 ; head*512
    v_lshl_add_u32 v8, v4, 5, v8            ; + g*32""")
    E(f"    s_add_u32 s28, s28, {WS_QACC}")
    for kk in range(4):
        E(f"    buffer_load_dwordx4 v[{224+kk*8}:{227+kk*8}], v8, s[20:23], s28 offen offset:{kk*128}")
        E(f"    buffer_load_dwordx4 v[{228+kk*8}:{231+kk*8}], v8, s[20:23], s28 offen offset:{kk*128+16}")
    for t in range(4):
        for s in range(2):
            E(f"    s_mov_b32 s29, {t*8192+s*4096}")
            for kk in range(4):
                b = 64 + t*32 + s*16 + kk*4
                E(f"    buffer_load_dwordx4 v[{b}:{b+3}], v6, s[12:15], s29 offen offset:{kk*64}")
    def vload(t, base):
        for jh in range(2):
            E(f"    s_mov_b32 s29, {t*8192+jh*4096}")
            for j4 in range(4):
                b = base + (jh*4+j4)*4
                E(f"    buffer_load_dwordx4 v[{b}:{b+3}], v7, s[16:19], s29 offen offset:{j4*256}")
    vload(0, 192)
    E("    s_waitcnt vmcnt(40)")
    for kk in range(4):
        for d in range(4):
            E(f"    v_cvt_pk_bf16_f32 v{16+kk*4+d}, v{224+kk*8+2*d}, v{225+kk*8+2*d}")
    for c in range(32):
        E(f"    v_mov_b32 v{224+c}, 0")
    for t in range(4):
        nV = 8 + 8*t if t > 0 else 8
        remaining_after = (3-t)*8 + 8 + (8*t)
        E(f"    s_waitcnt vmcnt({remaining_after})")
        for s in range(2):
            d = 32 + t*8 + s*4
            E(f"    v_mov_b32 v{d}, 0\n    v_mov_b32 v{d+1}, 0\n    v_mov_b32 v{d+2}, 0\n    v_mov_b32 v{d+3}, 0")
        E("    s_nop 1")
        for s in range(2):
            d = 32 + t*8 + s*4
            for kk in range(4):
                b = 64 + t*32 + s*16 + kk*4
                E(f"    v_mfma_f32_16x16x32_bf16 v[{d}:{d+3}], v[{b}:{b+3}], v[{16+kk*4}:{19+kk*4}], v[{d}:{d+3}]")
        if t < 3:
            vload(t+1, 64 + t*32)
    E("    s_nop 7\n    s_nop 1")
    E("    s_mov_b32 s30, 0x3db504f3               ; 128^-0.5")
    for i in range(0, 32, 2):
        a, b = 32+i, 33+i
        E(f"    v_cvt_pk_bf16_f32 v8, v{a}, v{b}")
        unpack(a, b, 8)
        E(f"    v_mul_f32 v{a}, s30, v{a}")
        E(f"    v_mul_f32 v{b}, s30, v{b}")
        E(f"    v_cvt_pk_bf16_f32 v8, v{a}, v{b}")
        unpack(a, b, 8)
    E("    v_max_f32 v9, v32, v33")
    for i in range(2, 32):
        E(f"    v_max_f32 v9, v9, v{32+i}")
    E("""    ds_swizzle_b32 v8, v9 offset:0x401F
    s_waitcnt lgkmcnt(0)
    v_max_f32 v9, v9, v8
    v_mov_b32 v8, v9
    s_nop 1
    v_permlane32_swap_b32 v8, v9
    s_nop 1
    v_max_f32 v9, v9, v8
    s_mov_b32 s31, 0x3fb8aa3b               ; log2e
    v_mul_f32 v10, s31, v9
    v_mov_b32 v11, 0""")
    for i in range(32):
        E(f"    v_fma_f32 v{32+i}, v{32+i}, s31, -v10")
        E(f"    v_exp_f32 v{32+i}, v{32+i}")
    E("    s_nop 0")
    for i in range(32):
        E(f"    v_add_f32 v11, v11, v{32+i}")
    for t in range(4):
        for k in range(4):
            E(f"    v_cvt_pk_bf16_f32 v{12+k}, v{32+8*t+2*k}, v{33+8*t+2*k}")
        for k in range(4):
            E(f"    v_mov_b32 v{32+4*t+k}, v{12+k}")
    E("    s_mov_b32 s32, 0x05040100\n    s_mov_b32 s33, 0x07060302")
    vb = [192, 64, 96, 128]
    for t in range(4):
        E(f"    s_waitcnt vmcnt({(3-t)*8})")
        for c in range(8):
            ob = (48 + c*4) if c < 4 else (16 + (c-4)*4)
            d, h = c // 2, c % 2
            for jj in range(4):
                E(f"    v_perm_b32 v{ob+jj}, v{vb[t]+(2*jj+1)*4+d}, v{vb[t]+(2*jj)*4+d}, s{32+h}")
        E("    s_nop 1")
        for c in range(8):
            ob = (48 + c*4) if c < 4 else (16 + (c-4)*4)
            E(f"    v_mfma_f32_16x16x32_bf16 v[{224+c*4}:{227+c*4}], v[{32+4*t}:{35+4*t}], v[{ob}:{ob+3}], v[{224+c*4}:{227+c*4}]")
    E("""    ds_swizzle_b32 v8, v11 offset:0x401F
    s_waitcnt lgkmcnt(0)
    v_add_f32 v11, v11, v8
    v_mov_b32 v8, v11
    s_nop 1
    v_permlane32_swap_b32 v8, v11
    s_nop 1
    v_add_f32 v11, v11, v8""")
    E("""    v_lshlrev_b32 v12, 5, v1
    v_lshl_add_u32 v12, v3, 2, v12          ; wave*32 + n*4
    v_cmp_gt_u32 vcc, 8, v2
    s_and_saveexec_b64 s[34:35], vcc
    ds_write_b32 v12, v9
    ds_write_b32 v12, v11 offset:256
    s_mov_b64 exec, s[34:35]
    s_nop 7
    s_nop 7
    v_cmp_gt_u32 vcc, 32, v2
    s_and_saveexec_b64 s[34:35], vcc
    v_lshlrev_b32 v13, 12, v1               ; wave*4096
    v_lshl_add_u32 v13, v4, 11, v13         ; + g*4*512
    v_lshl_add_u32 v13, v3, 5, v13          ; + n*32""")
    for c in range(8):
        for i in range(4):
            E(f"    ds_write_b32 v13, v{224+c*4+i} offset:{512+i*512+c*4}")
    E("""    s_mov_b64 exec, s[34:35]
    s_waitcnt lgkmcnt(0)
    s_barrier
    v_lshlrev_b32 v12, 2, v1""")
    for w in range(8):
        E(f"    ds_read_b32 v{16+w}, v12 offset:{w*32}")
        E(f"    ds_read_b32 v{24+w}, v12 offset:{256+w*32}")
    E("    v_lshlrev_b32 v13, 9, v1\n    v_lshl_add_u32 v13, v2, 3, v13")
    for w in range(8):
        E(f"    ds_read_b64 v[{32+2*w}:{33+2*w}], v13 offset:{512+w*4096}")
    E("    s_waitcnt lgkmcnt(0)")
    E("    v_max_f32 v9, v16, v17")
    for w in range(2, 8):
        E(f"    v_max_f32 v9, v9, v{16+w}")
    E("    v_mov_b32 v10, 0\n    v_mov_b32 v14, 0\n    v_mov_b32 v15, 0")
    for w in range(8):
        E(f"    v_sub_f32 v8, v{16+w}, v9")
        E(f"    v_mul_f32 v8, s31, v8")
        E(f"    v_exp_f32 v8, v8")
        E(f"    s_nop 0")
        E(f"    v_fmac_f32 v10, v8, v{24+w}")
        E(f"    v_fmac_f32 v14, v8, v{32+2*w}")
        E(f"    v_fmac_f32 v15, v8, v{33+2*w}")
    E(f"""    s_lshl_b32 s36, s2, 12
    s_add_u32 s36, s36, {WS_PO}
    buffer_store_dwordx2 v[14:15], v13, s[20:23], s36 offen
    v_cmp_eq_u32 vcc, 0, v2
    s_and_saveexec_b64 s[34:35], vcc
    s_lshl_b32 s36, s2, 5
    s_add_u32 s36, s36, {WS_PM}
    s_add_u32 s37, s36, {WS_PL-WS_PM}
    buffer_store_dword v9, v12, s[20:23], s36 offen
    buffer_store_dword v10, v12, s[20:23], s37 offen""")
    kernel_end(n, 256, 512 + 32768)

def k4():
    n = "k4_wo_kernel"
    kernel_begin(n, 256)
    load_ptrs([("wo", 6), ("ws", 8)])
    srd(16, 6, 4096*1024*2); srd(20, 8, WS_SIZE)
    E("""    s_lshr_b32 s26, s2, 3                   ; head
    s_and_b32 s27, s2, 7
    s_lshl_b32 s24, s27, 8
    s_lshl_b32 s25, s26, 7""")
    gemv([16], 16, 4, 2048, 24, 25, 0, 4096, 50)
    E("""    s_lshr_b32 s28, s26, 3                  ; kvh
    s_and_b32 s29, s26, 7                   ; hh
    s_lshl_b32 s30, s28, 11
    s_lshl_b32 s31, s29, 2
    s_add_u32 s30, s30, s31                 ; (kvh*64*8+hh)*4
    v_and_b32 v1, 63, v0
    v_lshlrev_b32 v8, 5, v1""")
    E(f"    s_add_u32 s30, s30, {WS_PM}")
    E(f"    s_add_u32 s33, s30, {WS_PL-WS_PM}")
    E(f"    buffer_load_dword v9, v8, s[20:23], s30 offen")
    E(f"    buffer_load_dword v10, v8, s[20:23], s33 offen")
    E("""    v_and_b32 v11, 127, v0
    v_lshrrev_b32 v12, 7, v0
    v_lshlrev_b32 v13, 16, v12              ; sg*16*4096
    v_lshl_add_u32 v13, v11, 2, v13
    s_lshl_b32 s31, s28, 18                 ; kvh*64*4096
    s_lshl_b32 s32, s29, 9
    s_add_u32 s31, s31, s32""")
    E(f"    s_add_u32 s31, s31, {WS_PO}")
    for k in range(16):
        E(f"    buffer_load_dword v{96+k}, v13, s[20:23], s31 offen offset:0")
        E(f"    s_add_u32 s31, s31, 4096")
    E("    s_waitcnt vmcnt(16)")
    E("    v_mov_b32 v14, v9")
    wave_reduce("v_max_f32", 14, 15)
    E("""    v_sub_f32 v9, v9, v14
    v_mul_f32 v9, 0x3fb8aa3b, v9
    v_exp_f32 v9, v9
    s_nop 0
    v_mul_f32 v10, v9, v10""")
    wave_reduce("v_add_f32", 10, 15)
    E("""    v_rcp_f32 v10, v10
    s_nop 0
    v_mul_f32 v9, v9, v10                   ; w/L
    v_lshlrev_b32 v8, 2, v0
    ds_write_b32 v8, v9 offset:2048
    s_waitcnt lgkmcnt(0)
    s_barrier
    v_lshlrev_b32 v8, 6, v12                ; sg*16*4""")
    for k in range(4):
        E(f"    ds_read_b128 v[{16+4*k}:{19+4*k}], v8 offset:{2048+16*k}")
    E("    v_mov_b32 v14, 0")
    E("    s_waitcnt vmcnt(0) lgkmcnt(0)")
    for k in range(16):
        E(f"    v_fmac_f32 v14, v{16+k}, v{96+k}")
    E("""    s_barrier
    v_lshlrev_b32 v8, 2, v0
    ds_write_b32 v8, v14 offset:2048
    s_waitcnt lgkmcnt(0)
    s_barrier
    v_and_b32 v8, 127, v0
    v_lshlrev_b32 v8, 2, v8
    ds_read_b32 v16, v8 offset:2048
    ds_read_b32 v17, v8 offset:2560
    ds_read_b32 v18, v8 offset:3072
    ds_read_b32 v19, v8 offset:3584
    s_waitcnt lgkmcnt(0)
    v_add_f32 v16, v16, v17
    v_add_f32 v18, v18, v19
    v_add_f32 v16, v16, v18""")
    rnd(16, 17)
    E("    ds_write_b32 v8, v16")
    E("    s_waitcnt lgkmcnt(0)")
    E("    s_barrier")
    E("    v_and_b32 v4, 127, v4")
    gemv_finish([16], 16, 4, 0, 4096, 50)
    E("    v_cmp_gt_u32 vcc, 128, v0")
    E("    s_and_saveexec_b64 s[34:35], vcc")
    E("    v_lshlrev_b32 v11, 2, v0")
    E("    s_lshl_b32 s27, s27, 9")
    E(f"    s_add_u32 s27, s27, {WS_ATT}")
    E("    v_add_u32 v11, s27, v11")
    E("    global_atomic_add_f32 v11, v50, s[8:9]")
    kernel_end(n, 128, 4096 + 32768)

def x1_compute(sx, sws, vx0, vx1, t0):
    E("    v_lshlrev_b32 v20, 3, v0")
    E(f"    s_mov_b32 s93, {WS_ATT}")
    E(f"    buffer_load_dwordx2 v[{t0}:{t0+1}], v20, s[{sws}:{sws+3}], s93 offen")
    E(f"    s_mov_b32 s92, {WS_MOD+8192}")
    E(f"    buffer_load_dwordx2 v[{t0+2}:{t0+3}], v20, s[{sws}:{sws+3}], s92 offen")
    E("    s_waitcnt vmcnt(0)")
    unpack(vx0, vx1, 10)
    for k, vx in enumerate((vx0, vx1)):
        rnd(t0+k, t0+4)
        E(f"    v_mul_f32 v{t0+k}, v{t0+k}, v{t0+2+k}")
        rnd(t0+k, t0+4)
        E(f"    v_add_f32 v{vx}, v{vx}, v{t0+k}")
        rnd(vx, t0+4)

def k5():
    n = "k5_gu_kernel"
    kernel_begin(n, 224)
    load_ptrs([("x", 4), ("wg", 6), ("wu", 10), ("ws", 8)])
    srd(12, 4, 2048); srd(16, 6, 1024*3584*2); srd(24, 10, 1024*3584*2); srd(20, 8, WS_SIZE)
    E("    v_lshlrev_b32 v1, 2, v0")
    E("    buffer_load_dword v10, v1, s[12:15], 0 offen")
    E("""    s_mov_b32 s28, 0x4924924a
    s_mul_hi_u32 s29, s2, 0x04924925
    s_mul_i32 s30, s29, 56
    s_sub_u32 s30, s2, s30                  ; cb
    s_lshl_b32 s32, s30, 7
    s_lshl_b32 s33, s29, 8""")
    gemv([16, 24], 8, 4, 7168, 32, 33, 0, 8192, 50)
    x1_compute(12, 20, 12, 13, 44)
    layernorm_mod(12, 13, 20, WS_MOD + 3*4096, WS_MOD + 4*4096, 0, 4096)
    E("    s_waitcnt lgkmcnt(0)")
    E("    s_barrier")
    gemv_finish([16, 24], 8, 4, 0, 8192, 50)
    E("    v_cmp_gt_u32 vcc, 64, v0")
    E("    s_and_saveexec_b64 s[34:35], vcc")
    E("    v_lshlrev_b32 v11, 2, v0")
    E("    s_mul_i32 s31, s29, 28672               ; ks*2*3584*4")
    E("    s_lshl_b32 s30, s30, 8")
    E("    s_add_u32 s31, s31, s30")
    E(f"    s_add_u32 s31, s31, {WS_AB}")
    E("    buffer_store_dword v50, v11, s[20:23], s31 offen")
    E("    s_add_u32 s31, s31, 14336")
    E("    buffer_store_dword v51, v11, s[20:23], s31 offen")
    kernel_end(n, 128, 8192 + 32768)

def k6():
    n = "k6_down_kernel"
    kernel_begin(n, 256)
    load_ptrs([("wd", 6), ("ws", 8)])
    srd(16, 6, 3584*1024*2); srd(20, 8, WS_SIZE)
    E("""    s_and_b32 s26, s2, 15
    s_lshr_b32 s27, s2, 4
    s_lshl_b32 s24, s26, 7
    s_mul_i32 s25, s27, 224""")
    gemv([16], 8, 4, 2048, 24, 25, 0, 8192, 50)
    E("""    v_add_u32 v8, s25, v0
    v_lshlrev_b32 v8, 2, v8""")
    for p in range(4):
        E(f"    s_mov_b32 s92, {WS_AB + p*28672}")
        E(f"    buffer_load_dword v{16+p}, v8, s[20:23], s92 offen")
        E(f"    s_mov_b32 s92, {WS_AB + p*28672 + 14336}")
        E(f"    buffer_load_dword v{20+p}, v8, s[20:23], s92 offen")
    E("""    s_waitcnt vmcnt(0)
    v_add_f32 v16, v16, v17
    v_add_f32 v18, v18, v19
    v_add_f32 v16, v16, v18
    v_add_f32 v20, v20, v21
    v_add_f32 v22, v22, v23
    v_add_f32 v20, v20, v22""")
    rnd(16, 24); rnd(20, 24)
    E("""    v_mul_f32 v24, v16, v16
    v_mul_f32 v24, v24, v16
    v_mul_f32 v24, 0x3d372713, v24          ; 0.044715 a^3
    v_add_f32 v24, v24, v16
    v_mul_f32 v24, 0x3f4c422a, v24          ; sqrt(2/pi)
    v_mul_f32 v25, 0x4038aa3b, v24          ; 2*log2e*u
    v_exp_f32 v25, v25
    s_nop 0
    v_add_f32 v25, 1.0, v25
    v_rcp_f32 v25, v25
    s_nop 0
    v_fma_f32 v25, v25, -2.0, 1.0           ; tanh
    v_add_f32 v25, 1.0, v25
    v_mul_f32 v25, 0.5, v25
    v_mul_f32 v25, v25, v16""")
    rnd(25, 24)
    E("    v_mul_f32 v25, v25, v20")
    rnd(25, 24)
    E("""    v_cmp_gt_u32 vcc, 224, v0
    v_cndmask_b32 v25, 0, v25, vcc
    v_lshlrev_b32 v8, 2, v0
    ds_write_b32 v8, v25
    s_waitcnt lgkmcnt(0)
    s_barrier
    v_subrev_u32 v4, s25, v4""")
    gemv_finish([16], 8, 4, 0, 8192, 50)
    E("    v_cmp_gt_u32 vcc, 64, v0")
    E("    s_and_saveexec_b64 s[34:35], vcc")
    E("    v_lshlrev_b32 v11, 2, v0")
    E("    s_lshl_b32 s28, s27, 12")
    E("    s_lshl_b32 s29, s26, 8")
    E("    s_add_u32 s28, s28, s29")
    E(f"    s_add_u32 s28, s28, {WS_YP}")
    E("    buffer_store_dword v50, v11, s[20:23], s28 offen")
    kernel_end(n, 128, 8192 + 16384)

def k7():
    n = "k7_out_kernel"
    kernel_begin(n, 1)
    load_ptrs([("x", 4), ("out", 6), ("ws", 8)])
    srd(12, 4, 2048); srd(16, 6, 2048); srd(20, 8, WS_SIZE)
    E("    v_lshlrev_b32 v1, 2, v0")
    E("    buffer_load_dword v10, v1, s[12:15], 0 offen")
    E("    v_lshlrev_b32 v20, 3, v0")
    for p in range(16):
        E(f"    s_mov_b32 s92, {WS_YP + p*4096}")
        E(f"    buffer_load_dwordx2 v[{64+2*p}:{65+2*p}], v20, s[20:23], s92 offen")
    E(f"    s_mov_b32 s92, {WS_MOD + 5*4096}")
    E("    buffer_load_dwordx2 v[60:61], v20, s[20:23], s92 offen")
    x1_compute(12, 20, 12, 13, 44)
    for k in range(2):
        for p in range(1, 16):
            E(f"    v_add_f32 v{64+k}, v{64+k}, v{64+2*p+k}")
        rnd(64+k, 50)
        E(f"    v_mul_f32 v{64+k}, v{64+k}, v{60+k}")
        rnd(64+k, 50)
        E(f"    v_add_f32 v{64+k}, v{64+k}, v{12+k}")
    E("    v_cvt_pk_bf16_f32 v50, v64, v65")
    E("    buffer_store_dword v50, v1, s[16:19], 0 offen")
    kernel_end(n, 128, 0)

hdr = open("adaLN_cond__gqa_block_cached__geglu_ffn__decode.s.ref").read().split("\n")
body_start = None
k1(); k2(); k3(); k4(); k5(); k6(); k7()
body = OUT; OUT = []
grids = dict(k1_mod_kernel=192, k2_q_kernel=256, k3_attn_kernel=256, k4_wo_kernel=256, k5_gu_kernel=224, k6_down_kernel=256, k7_out_kernel=1)
txt = []
for l in hdr:
    if l.startswith(";") and "@launch" not in l and "Override" not in l and "grid=ceil" not in l:
        txt.append(l)
for name, vg, lds in KERNELS:
    txt.append(f"; @launch kernel={name} grid=({grids[name]},1,1) block=(512,1,1) lds={lds}")
txt.append('.amdgcn_target "amdgcn-amd-amdhsa--gfx950"')
txt.append(".text")
txt += body
txt.append('.section .rodata,"a"')
for name, vg, lds in KERNELS:
    txt.append(f""".p2align 6
.amdhsa_kernel {name}
  .amdhsa_next_free_vgpr {vg}
  .amdhsa_next_free_sgpr 102
  .amdhsa_accum_offset {vg}
  .amdhsa_group_segment_fixed_size 0
  .amdhsa_kernarg_size 112
  .amdhsa_user_sgpr_count 2
  .amdhsa_user_sgpr_kernarg_segment_ptr 1
  .amdhsa_system_sgpr_workgroup_id_x 1
.end_amdhsa_kernel""")
open("adaLN_cond__gqa_block_cached__geglu_ffn__decode.s", "w").write("\n".join(txt) + "\n")
```
